```python
import torch

def _softmax(x, axis=-1):
    return torch.softmax(x, dim=axis)
def _gelu(x):
    return torch.nn.functional.gelu(x, approximate="tanh")
def _silu(x):
    return torch.nn.functional.silu(x)
def _sigmoid(x):
    return torch.sigmoid(x)
def _layernorm(x, axis=-1, eps=1e-5):
    m = x.mean(dim=axis, keepdim=True)
    v = x.var(dim=axis, keepdim=True, unbiased=False)
    return (x - m) / torch.sqrt(v + eps)
def _scatter_add(tgt, idx, src, axis=0):
    return tgt.clone().index_add_(axis, idx, src)
def _segment_sum(src, seg, n):
    out = torch.zeros((n,) + src.shape[1:], dtype=src.dtype)
    return out.index_add_(0, seg, src)
def _pad(x, pw):
    flat = tuple(v for pair in reversed(pw) for v in pair)
    return torch.nn.functional.pad(x, flat)

kernel_name = 'standalone__modern_conv_block_convnext__vision'

def setup_inputs():

    _w = (lambda a: (lambda t: t.to(torch.bfloat16) if t.is_floating_point() else t)(torch.as_tensor(a)))
    H = W = 224
    C = 96
    K = 7
    return {
        "x": _w((lambda *s: torch.randn(*s, dtype=torch.bfloat16) * 0.05)(1, H, W, C)),
        "dw": _w((lambda *s: torch.randn(*s, dtype=torch.bfloat16) * 0.05)(K, K, C)),
        "w1": _w((lambda *s: torch.randn(*s, dtype=torch.bfloat16) * 0.05)(C, 4 * C)),
        "b1": _w((lambda *s: torch.randn(*s, dtype=torch.bfloat16) * 0.2)(4 * C)),
        "w2": _w((lambda *s: torch.randn(*s, dtype=torch.bfloat16) * 0.05)(4 * C, C)),
        "b2": _w((lambda *s: torch.randn(*s, dtype=torch.bfloat16) * 0.4)(C)),
        "gamma": _w((lambda *s: torch.randn(*s, dtype=torch.bfloat16) * 0.05)(C)),
    }

def reference(x, dw, w1, b1, w2, b2, gamma):
    B, H, W, C = x.shape
    K = dw.shape[0]
    pad = K // 2
    xp = _pad(x, ((0,0),(pad,pad),(pad,pad),(0,0)))
    out = torch.zeros_like(x)
    for i in range(K):
        for j in range(K):
            out = out + xp[:, i:i+H, j:j+W, :] * dw[i, j][None, None, None, :]
    h = _layernorm(out, axis=-1)
    h = torch.einsum('bhwc,ce->bhwe', h, w1) + b1
    h = _gelu(h)
    h = torch.einsum('bhwe,ec->bhwc', h, w2) + b2
    return x + gamma[None, None, None, :] * h
```

```python
import re

REG = re.compile(r"^(-|abs\()?([vas])(\d+|\[(\d+):(\d+)\])\)?$")

def regs_of(tok):
    tok = tok.strip()
    if tok in ("vcc", "exec"):
        return [tok]
    if tok in ("exec_lo", "exec_hi"):
        return ["exec"]
    if tok == "m0":
        return ["m0"]
    m = REG.match(tok)
    if not m:
        return []
    k = m.group(2)
    if m.group(4) is not None:
        return [f"{k}{i}" for i in range(int(m.group(4)), int(m.group(5)) + 1)]
    return [f"{k}{m.group(3)}"]

TRANS = ("v_exp_f32", "v_rcp_f32", "v_rsq_f32", "v_log_f32", "v_sqrt_f32")

class Ins:
    def __init__(s, text, tag=None):
        s.text = text
        s.tag = tag
        body = text.split(";")[0].strip()
        parts = body.split(None, 1)
        s.mn = mn = parts[0]
        rest = parts[1] if len(parts) > 1 else ""
        toks = [t.strip() for t in re.split(r",(?![^\[]*\])", rest)] if rest else []
        s.mods = ""
        if toks:
            last = toks[-1].split(None, 1)
            toks[-1] = last[0]
            s.mods = last[1] if len(last) > 1 else ""
        s.ops = toks
        R = lambda idx: [r for i in idx if i < len(toks) for r in regs_of(toks[i])]
        n = len(toks)
        s.rd, s.wr = [], []
        s.srcA = s.srcB = s.srcC = []
        s.kind = "salu"
        if mn.endswith(":"):
            s.kind = "label"
        elif mn.startswith("v_mfma") or mn.startswith("v_smfmac"):
            s.kind = "mfma"
            s.passes = 8 if "32x32" in mn else 4
            s.wr = R([0]); s.srcA = R([1]); s.srcB = R([2])
            if mn.startswith("v_smfmac"):
                s.srcC = R([0]); s.srcA = s.srcA + R([3])
            else:
                s.srcC = R([3])
            s.rd = s.srcA + s.srcB + s.srcC
        elif mn.startswith("ds_read"):
            s.kind = "dsr"; s.wr = R([0]); s.rd = R([1]) + ["exec"]
        elif mn.startswith("ds_write"):
            s.kind = "dsw"; s.rd = R(range(n)) + ["exec"]
            s.ndw = len(R(range(1, n)))
        elif mn.startswith("buffer_load"):
            if "lds" in s.mods.split():
                s.kind = "dma"; s.rd = R(range(n)) + ["m0", "exec"]
            else:
                s.kind = "vld"; s.wr = R([0]); s.rd = R(range(1, n)) + ["exec"]
        elif mn.startswith("buffer_store"):
            s.kind = "vst"; s.rd = R(range(n)) + ["exec"]; s.data = R([0])
        elif mn.startswith("v_"):
            base = re.sub(r"_(e32|e64|dpp|sdwa)$", "", mn)
            s.kind = "trans" if base in TRANS else ("pk" if re.match(r"v_pk_(fma|mul|add)_f32|v_dot2", base) else "valu")
            s.wr = R([0]); s.rd = R(range(1, n)) + ["exec"]
            if base.startswith(("v_fmac", "v_writelane")):
                s.rd += R([0])
            if base.startswith("v_permlane"):
                s.rd += R([0]); s.wr += R([1])
            if base.startswith("v_cndmask") and n == 3:
                s.rd.append("vcc")
        elif mn == "s_waitcnt":
            s.kind = "wait"
        elif mn == "s_barrier":
            s.kind = "barrier"
        elif mn == "s_nop":
            s.kind = "nop"; s.n = int(toks[0]) + 1
        elif mn.startswith(("s_load", "s_memtime", "s_memrealtime")):
            s.kind = "smem"; s.wr = R([0]); s.rd = R(range(1, n))
        elif mn.startswith(("s_cmp", "s_cbranch", "s_branch", "s_endpgm", "s_setprio")):
            s.rd = R(range(n))
        else:
            s.wr = R([0]); s.rd = R(range(1, n))
            if "saveexec" in mn:
                s.rd.append("exec"); s.wr.append("exec")
        s.rd = set(s.rd); s.wr = set(s.wr)

    def is_valu(s):
        return s.kind in ("valu", "trans", "pk")

class Prog:
    def __init__(s):
        s.ins = []
    def e(s, text, tag=None):
        for line in text.strip().split("\n"):
            line = line.strip()
            if line:
                s.ins.append(Ins(line, tag))
        return s.ins[-1]
    def ext(s, lst):
        for x in lst:
            if isinstance(x, Ins): s.ins.append(x)
            elif isinstance(x, (list, tuple)): s.ext(x)
            else: s.e(x)

class Wait(Ins):
    def __init__(s, vm=(), lg=(), all_lg=False, all_vm=False):
        super().__init__("s_waitcnt vmcnt(63)")
        s.kind = "waitph"; s.vm = set([vm] if isinstance(vm, str) else vm); s.lg = set([lg] if isinstance(lg, str) else lg)
        s.all_lg = all_lg; s.all_vm = all_vm

def mkwait(vm, lg):
    t = []
    if vm is not None: t.append(f"vmcnt({min(vm, 63)})")
    if lg is not None: t.append(f"lgkmcnt({min(lg, 15)})")
    return Ins("s_waitcnt " + " ".join(t))

def resolve_waits(prog, verbose=False):
    out = []; vq = []; lq = []; auto = 0
    def need(q, pred):
        idx = [i for i, o in enumerate(q) if pred(o)]
        return None if not idx else len(q) - 1 - idx[-1]
    def apply(vm, lg):
        if lg is not None and any(o.kind == "smem" for o in lq): lg = 0
        if vm is not None:
            vm = min(vm, 63); del vq[:max(0, len(vq) - vm)]
        if lg is not None:
            lg = min(lg, 15); del lq[:max(0, len(lq) - lg)]
        return vm, lg
    for i in prog.ins:
        if i.kind == "waitph":
            vm = (0 if vq else None) if i.all_vm else need(vq, lambda o: o.tag in i.vm)
            lg = (0 if lq else None) if i.all_lg else need(lq, lambda o: o.tag in i.lg)
            if vm is None and lg is None: continue
            out.append(mkwait(*apply(vm, lg))); continue
        if i.kind == "wait":
            m = re.search(r"vmcnt\((\d+)\)", i.text); n = re.search(r"lgkmcnt\((\d+)\)", i.text)
            apply(int(m.group(1)) if m else None, int(n.group(1)) if n else None)
            out.append(i); continue
        touch = i.rd | i.wr
        vm = need(vq, lambda o: o.wr & touch)
        lg = need(lq, lambda o: o.wr & touch)
        if i.kind == "vld" and vm is not None and need(vq, lambda o: o.wr & i.rd) is None: vm = None
        if i.kind == "dsr" and lg is not None and need(lq, lambda o: (o.wr & i.rd) or o.kind == "smem") is None: lg = None
        if vm is not None or lg is not None:
            w = mkwait(*apply(vm, lg)); w.auto = True; out.append(w); auto += 1
            if verbose: print("auto wait", w.text, "before", i.text)
        out.append(i)
        if i.kind in ("vld", "vst", "dma"): vq.append(i)
        if i.kind in ("dsr", "dsw", "smem"): lq.append(i)
    prog.ins = out
    return auto

def check_hazards(prog, fix=True):
    out = []; pads = 0
    def states_since(k):
        return sum((x.n if x.kind == "nop" else 0 if x.kind == "label" else 1) for x in out[k + 1:])
    for i in prog.ins:
        need = 0; why = None
        lo = max(0, len(out) - 24)
        for k in range(len(out) - 1, lo - 1, -1):
            p = out[k]; r = 0
            vw = {x for x in p.wr if x[0] in "va" and x != "vcc"}
            sw = {x for x in p.wr if x[0] == "s" or x == "vcc"}
            if p.is_valu():
                if i.kind == "mfma" and vw & i.rd: r = 2
                if p.kind == "trans" and i.is_valu() and i.kind != "trans" and vw & i.rd: r = max(r, 1)
                if i.mn.startswith(("v_readfirstlane", "v_readlane")) and vw & i.rd: r = max(r, 1)
                if (i.mn.startswith("v_permlane") or "dpp" in i.mn) and vw & i.rd: r = max(r, 2)
                if i.kind in ("vld", "vst", "dma") and sw & i.rd: r = max(r, 5)
                if i.is_valu() and sw & i.rd: r = max(r, 2)
                if i.kind == "salu" and sw & i.rd: r = max(r, 2)
            if p.kind == "mfma":
                big = p.passes == 8
                if i.kind == "mfma":
                    if p.wr & (set(i.srcA) | set(i.srcB)): r = 12 if big else 8
                    elif p.wr & set(i.srcC) and not (set(i.srcC) == p.wr and i.passes == p.passes): r = 10 if big else 6
                    elif p.wr & i.wr and not (set(i.srcC) == p.wr): r = 12 if big else 8
                elif (i.is_valu() or i.kind in ("dsr", "dsw", "vld", "vst", "dma")) and p.wr & (i.rd | i.wr): r = 12 if big else 8
                if (i.is_valu() or i.kind in ("dsr", "vld")) and set(p.srcC) & i.wr: r = max(r, 7 if big else 3)
            if p.kind == "vst" and len(p.data) >= 3 and (i.is_valu() or i.kind in ("dsr", "vld")) and set(p.data) & i.wr: r = max(r, 2)
            if p.kind == "salu" and "m0" in p.wr and i.kind == "dma": r = max(r, 1)
            if r:
                d = r - states_since(k)
                if d > need: need = d; why = p
        if need > 0:
            if not fix: raise RuntimeError(f"hazard: {why.text} -> {i.text}")
            x = Ins(f"s_nop {need - 1}"); x.pad = (why.text, i.text); out.append(x); pads += need
        out.append(i)
    prog.ins = out
    return pads

def estimate(prog, marks=True):
    t = 0; mfree = 0; mdrain = 0; last_valu = -100; last_mfma = -100; res = []; dsw_free = 0; idle = 0
    for i in prog.ins:
        k = i.kind
        if k == "label": res.append((i.text, t, idle)); continue
        if k == "mfma":
            s = max(t, mfree); idle += s - t
            dur = 4 * i.passes; hold = 12 if i.mn.startswith("v_smfmac") else 8
            mfree = s + dur; mdrain = s + dur + 12; last_mfma = s; t = s + hold; i.t = s; last_valu = s + hold - 8
        elif k == "pk":
            s = max(t, mdrain); idle += s - t; i.t = s; last_valu = s + 4 - 4 + 4; t = s + 4
        elif k in ("valu", "trans"):
            d = 8 if k == "trans" else 4; i.t = t; t += d; last_valu = t
        elif k in ("dsr", "dsw", "vld", "vst", "dma"):
            s = max(t, last_valu + 8);
            if k == "dsw":
                s = max(s, dsw_free); dsw_free = s + 13 * i.ndw
            idle += s - t; i.t = s
            t = s + (4 + 4 * i.ndw if k == "dsw" else 4)
        elif k == "nop":
            i.t = t; t += 4 * i.n
        else:
            if t - last_mfma == 8 and not getattr(prog, "_used", None) == last_mfma:
                prog._used = last_mfma; i.t = t
            else:
                i.t = t; t += 4
    return t, res, idle

def render(prog):
    return "\n".join(("" if i.kind == "label" else "    ") + i.text for i in prog.ins if not (i.kind == "label" and i.text.startswith("@")))
```

```python
from fw import *

def phaseC(k):
    import kgen as G
    from kgen import v, a, s, w1reg, w2reg
    e = k.e
    NU = 21
    slot_of = lambda u: u % 6 if u < 18 else 2 * (u - 18)
    X = lambda u: G.V_X + 16 * (u % 3)
    CH, BI, GG, O, B, XR, WS = G.V_CH, G.V_BIAS, G.V_G, G.V_O, G.V_B, G.V_XR, G.V_WS
    AT = (24, 72, 120)
    MF = "v_mfma_f32_32x32x16_bf16"

    def gemm1(u):
        return [f"{MF} {v(X(u),16)}, {w1reg(slot_of(u),j)[0]}, {v(B+4*j,4)}, {v(BI,16) if j == 0 else v(X(u),16)}" for j in range(6)]
    def gemm2(u):
        o = []
        for ct in range(3):
            for st in range(2):
                w = w2reg(slot_of(u), ct, st)[0]; g = v(GG + 4 * st, 4)
                if u >= 18:
                    c = "0" if (u == 18 and st == 0) else a(AT[ct], 16)
                    o.append(f"{MF} {a(AT[ct],16)}, {g}, {w}, {c}")
                else:
                    c = "0" if (u == 12 and ct == 2 and st == 0) else v(O + 16 * ct, 16)
                    o.append(f"{MF} {v(O+16*ct,16)}, {w}, {g}, {c}")
        return o
    pr = lambda r, i: v(r + 2 * i, 2)
    cvt = lambda u: [f"v_cvt_pk_bf16_f32 {v(GG+i)}, {v(X(u)+2*i)}, {v(X(u)+2*i+1)}" for i in range(8)]
    ex = [f"v_exp_f32 {v(CH+i)}, {v(CH+i)}" for i in range(16)]
    rc = [f"v_rcp_f32 {v(CH+i)}, {v(CH+i)}" for i in range(16)]
    dd = [f"v_pk_add_f32 {pr(CH,i)}, {pr(CH,i)}, {s(G.S_ONE,2)}" for i in range(8)]
    yy = lambda u: [f"v_pk_mul_f32 {pr(X(u),i)}, {pr(X(u),i)}, {pr(CH,i)}" for i in range(8)]
    tt = lambda u: [f"v_pk_fma_f32 {pr(CH,i)}, {pr(X(u),i)}, {pr(X(u),i)}, {s(G.S_NBETA,2)} neg_lo:[1,0,0] neg_hi:[1,0,0]" for i in range(8)]
    zz = lambda u: [f"v_pk_mul_f32 {pr(CH,i)}, {pr(CH,i)}, {pr(X(u),i)}" for i in range(8)]
    def bias(u):
        sl = slot_of(u); ad = G.V_BIA1 if sl & 1 else G.V_BIA0
        return [Ins(f"ds_read_b128 {v(BI+4*q,4)}, {v(ad)} offset:{256*(sl>>1)+32*q}", f"bi{u}") for q in range(4)]
    bfrag = lambda j, tag: Ins(f"ds_read_b128 {v(B+4*j,4)}, {v(G.V_LNR)} offset:{1024*j}", tag)
    tab = lambda dst, q, off, tag: Ins(f"ds_read_b128 {v(dst,4)}, {v(G.V_GM)} offset:{off+16*q}", tag)
    def cost(x):
        if isinstance(x, (list, tuple)): return sum(cost(y) for y in x)
        i = x if isinstance(x, Ins) else Ins(x)
        return {"trans": 8, "dsw": 20, "waitph": 0}.get(i.kind, 4)

    def section(M, slots, fill, tail=40):
        fill = list(fill)
        if not M:
            for lst in slots.values(): k.x(lst)
            k.x(fill); return
        for i, m in enumerate(M):
            k.x([m]); ex_ = slots.get(i, []); k.x(ex_)
            if i == len(M) - 1: break
            room = 24 - cost(ex_)
            while fill and room >= cost(fill[0]) and cost(fill) - cost(fill[0]) >= tail:
                room -= cost(fill[0]); k.x([fill.pop(0)])
        k.x(fill)
    def spread(items, idx, into):
        n = len(items); per = -(-n // len(idx))
        for q, i in enumerate(idx): into.setdefault(i, []).extend(items[q * per:(q + 1) * per])

    def store(i, reg):
        return [f"v_cmp_le_u32 vcc, {s(G.S_THR+i)}, {v(G.V_L16)}", "s_nop 1",
                f"v_cndmask_b32 {v(G.V_TMP2)}, {v(G.V_L16)}, {v(G.V_L16B)}, vcc",
                Ins(f"buffer_store_dwordx4 {v(reg,4)}, {v(G.V_TMP2)}, {s(G.SRD_OUT,4)}, {s(G.S_SOFF+i)} offen sc0 sc1", "out")]
    def xres(j, ad):
        so = s(G.S_XA if j < 3 else G.S_XBB)
        return Ins(f"buffer_load_dwordx4 {v(XR+4*j,4)}, {v(ad)}, {s(G.SRD_X,4)}, {so} offen offset:{16*(j%3)}", "xr")
    resid = lambda j: f"{MF} {v(O+16*(j>>1),16)}, {v(G.V_ID+4*(j&1),4)}, {v(XR+4*j,4)}, {v(O+16*(j>>1),16)}"
    gmul = lambda r0, n, g0: [f"v_pk_mul_f32 {pr(O+r0,i)}, {pr(O+r0,i)}, {pr(g0,i)}" for i in range(n)]
    def pack(r0, n): return [f"v_cvt_pk_bf16_f32 {v(O+r0+i)}, {v(O+r0+2*i)}, {v(O+r0+2*i+1)}" for i in range(n)]

    k.x([bfrag(j, "B") for j in range(6)]); k.x(bias(0))
    d1, _ = k.dma("w1", 2); d2, _ = k.dma("w2", 2)
    k.x(d1[:3])
    k.x([Wait(lg=("B", "bi0"))])
    sl = {}
    spread(d1[3:] + d2, range(5), sl)
    sl[5] = bias(1) + [tab(O + 4 * q, q, 0, "oi") for q in range(12)]
    section(gemm1(0), sl, [])
    k.x(tt(0)); k.x(zz(0))
    k.mark("c0")

    for u in range(NU):
        SA, SB = {}, {}
        preA, preB, postB = [], [], []
        MA = gemm1(u + 1) if u + 1 < NU else []
        MB = gemm2(u - 1) if u >= 1 else []
        FA = (cvt(u - 1) if u >= 1 else []) + ex
        FB = list(rc)
        PA = list(dd)
        PB = yy(u) + (tt(u + 1) + zz(u + 1) if u + 1 < NU else [])
        if MA: preA.append(Wait(lg=(f"bi{u+1}", "B", f"W1_{slot_of(u+1)}")))
        if MB: preB.append(Wait(lg=(f"W2_{slot_of(u-1)}", "oi", "ring")))
        nb = bias(u + 2) if u + 2 < NU else []
        if u < 4:
            if u in (0, 2):
                preA = [Wait(vm=(f"w1{u//2+1}", f"w2{u//2+1}"), all_lg=True), "s_barrier"] + preA
            spread(k.wtr("w1", u + 2), range(6), SA)
            spread(k.wtr("w2", u + 2), range(6), SB)
        if u in (4, 10, 16):
            preA.append(f"v_add_u32 {v(G.V_LNR)}, {s(k.s_dln[u//6])}, {v(G.V_LNR)}")
            for j in range(5): SA.setdefault(j + 1, []).append(bfrag(j, "B"))
            SB.setdefault(0, []).append(bfrag(5, "B"))
        if u == 5:
            preA += [f"s_mul_i32 {s(G.S_T0)}, {s(G.S_W)}, 12288", f"s_add_u32 {s(G.S_T0)}, {s(G.S_T0)}, {G.L_RING}",
                     f"v_add_u32 {v(G.V_TMP)}, {s(G.S_T0)}, {v(G.V_L16)}",
                     f"s_xor_b32 {s(G.S_T0)}, {s(G.S_W)}, 1", f"s_mul_i32 {s(G.S_T0)}, {s(G.S_T0)}, 12288", f"s_add_u32 {s(G.S_T0)}, {s(G.S_T0)}, {G.L_RING}",
                     f"v_add_u32 {v(G.V_TMP2)}, {s(G.S_T0)}, {v(G.V_L16)}"]
        rw = lambda q: Ins(f"ds_write_b128 {v(G.V_TMP)}, {v(O+4*q,4)} offset:{1024*q}", "rw")
        if u == 6:
            PB = PB[:8] + [rw(0)] + PB[8:14] + [rw(1)] + PB[14:20] + [rw(2)] + PB[20:]
        if u == 7:
            for i in range(6): SA.setdefault(i, []).append(rw(3 + i))
            PA = [rw(9)] + PA[:4] + [rw(10)] + PA[4:] + [rw(11)]
            preB = FB[:6] + [Wait(all_lg=True), "s_barrier"]
            preB += [Ins(f"ds_read_b128 {v(O+4*q,4)}, {v(G.V_TMP2)} offset:{1024*((q+6)%12)}", f"ring{q//4}") for q in range(12)]
            preB += FB[6:12] + [Wait(lg="ring0")]
            FB = FB[12:]
            SB.setdefault(1, []).append(Wait(lg="ring1")); SB.setdefault(3, []).append(Wait(lg="ring2"))
        if u in (8, 9):
            for i in range(3): SA.setdefault(2 * i, []).append(xres(3 * (u - 8) + i, G.V_XRB))
        if u == 12:
            FX = X(14)
            SB.setdefault(0, []).extend(tab(FX + 4 * q, q, 576, "g0") for q in range(4))
            SB.setdefault(1, []).extend(tab(BI + 4 * q, 4 + q, 576, "g1") for q in range(4))
            nb = []
            PB = [Wait(lg=("g0", "g1"))] + gmul(0, 8, FX) + [tab(FX + 4 * q, 8 + q, 576, "g2") for q in range(4)] + yy(u) + gmul(16, 8, BI) + tt(u + 1) + zz(u + 1) + [Wait(lg="g2")] + gmul(32, 8, FX)
        if u == 13:
            ow = lambda j: Ins(f"ds_write_b128 {v(G.V_OW0 if j < 3 else G.V_OW1)}, {v(O+16*(j>>1)+4*(j&1),4)} offset:{16*(j%3)}", "ow")
            preA = [Wait(vm="xr")]
            MA = [resid(j) for j in range(6)] + MA
            SA[0] = bias(14)
            SA[5] = [Wait(lg="bi14")] + pack(0, 8)
            SA[6] = [ow(0)]; SA[7] = [ow(1)] + pack(16, 8); SA[8] = [ow(2)]; SA[9] = [ow(3)] + pack(32, 8)
            SA[10] = [ow(4)]; SA[11] = [ow(5)]
            SA[11] += [tab(O + 4 * q, q, 0, "oi") for q in range(6)]
            PA = PA + [f"v_mov_b32 {v(O+24+i)}, 0" for i in range(8)]
            for j in range(6):
                SB.setdefault(j, []).append(Ins(f"ds_read_b128 {v(XR+4*j,4)}, {v(G.V_OR0+j%3)} offset:{3328*(j//3)}", "rb"))
        if u in (14, 15):
            for i in range(3): SB.setdefault(2 * i, []).extend(store(3 * (u - 14) + i, XR + 4 * (3 * (u - 14) + i)))
        if u == 16:
            for i in range(3): SB.setdefault(2 * i + 1, []).append(xres(i, G.V_XRC))
        if u == 17:
            preA += [f"s_mul_i32 {s(G.S_T0)}, {s(G.S_W)}, 6144", f"s_add_u32 {s(G.S_T0)}, {s(G.S_T0)}, {G.L_TCX}",
                     f"v_add_u32 {v(G.V_TMP)}, {s(G.S_T0)}, {v(G.V_L16)}",
                     f"s_xor_b32 {s(G.S_T0)}, {s(G.S_W)}, 1", f"s_mul_i32 {s(G.S_T0)}, {s(G.S_T0)}, 6144", f"s_add_u32 {s(G.S_T0)}, {s(G.S_T0)}, {G.L_TCX}",
                     f"v_add_u32 {v(G.V_XRB)}, {s(G.S_T0)}, {v(G.V_L16)}",
                     f"s_mul_i32 {s(G.S_T0)}, {s(G.S_GRP)}, 6656", f"s_mul_i32 {s(G.S_T1)}, {s(G.S_W)}, 6656",
                     f"s_sub_u32 {s(G.S_T0)}, {s(G.S_T0)}, {s(G.S_T1)}", f"s_add_u32 {s(G.S_T0)}, {s(G.S_T0)}, {(G.L_OUTC-G.L_OUTB) & 0xffffffff}",
                     f"v_add_u32 {v(G.V_OW0)}, {s(G.S_T0)}, {v(G.V_OW0)}",
                     f"s_mul_i32 {s(G.S_T1)}, {s(G.S_HH)}, 3328", f"s_add_u32 {s(G.S_T0)}, {s(G.S_T0)}, {s(G.S_T1)}"]
            preA += [f"v_add_u32 {v(G.V_OR0+i)}, {s(G.S_T0)}, {v(G.V_OR0+i)}" for i in range(3)]
        if u == 19:
            for q in range(6):
                SA.setdefault(q, []).append(Ins(f"ds_write_b128 {v(G.V_TMP)}, {v(O+24+4*q,4)} offset:{1024*q}", "cw"))
            preB += [Wait(all_lg=True), "s_barrier"]
            spread([Ins(f"ds_read_b128 {v(WS+4*q,4)}, {v(G.V_XRB)} offset:{1024*q}", "cr") for q in range(6)]
                   + [tab(O + 24 + 4 * q, q, 576, "cr") for q in range(6)], range(4), SB)
            PB = PB + [Wait(lg="cr")] + [f"v_pk_add_f32 {pr(O,i)}, {pr(O,i)}, {pr(WS,i)}" for i in range(12)] + gmul(0, 12, O + 24)
        if u == 20:
            ow = lambda j: Ins(f"ds_write_b128 {v(G.V_OW0)}, {v(O+4*j,4)} offset:{16*j}", "ow")
            preA = [Wait(vm="xr")]
            MA = [resid(j) for j in range(3)]
            x6 = [Ins(f"buffer_load_ushort {v(XR+12+p)}, {v(G.V_T6X)}, {s(G.SRD_X,4)}, 0 offen offset:{192*p}", "x6") for p in range(4)]
            SA[0] = x6[:2]; SA[1] = x6[2:]
            PA = PA + pack(0, 12)
            for j in range(3): SB.setdefault(2 * j, []).append(ow(j))
            SB.setdefault(5, []).extend([Ins(f"ds_read_b32 {v(WS)}, {v(G.V_T6X+1)}", "t6t"), Ins(f"ds_read_b32 {v(WS+1)}, {v(G.V_T6X+1)} offset:576", "t6t")])
            PB = PB + [Wait(all_lg=True), "s_barrier"]
            PB += [Ins(f"ds_read_b128 {v(XR+4*j,4)}, {v(G.V_OR0+j)}", "rb") for j in range(3)]
        spread(nb, (2, 3, 4, 5), SB) if nb else None
        k.x(preA); section(MA, SA, FA); k.x(PA)
        k.x(preB); section(MB, SB, FB, tail=36); k.x(PB)
        if u in (5, 11, 17): k.mark(f"u{u}")
    k.mark("drain")
    k.x(cvt(20))
    sl = {0: store(6, XR), 2: store(7, XR + 4), 4: store(8, XR + 8)}
    e(f"s_mul_i32 {s(G.S_T0)}, {s(G.S_W)}, 3072"); e(f"s_add_u32 {s(G.S_T0)}, {s(G.S_T0)}, {G.L_T6}")
    e(f"v_add_u32 {v(G.V_TMP)}, {s(G.S_T0)}, {v(G.V_L16)}")
    section(gemm2(20), sl, [])
    for ct in range(3): e(f"ds_write_b128 {v(G.V_TMP)}, {a(AT[ct],4)} offset:{1024*ct}")
    k.x([Wait(all_lg=True)]); e("s_barrier")
    e(f"s_cmp_lg_u32 {s(G.S_GRP)}, 0"); e("s_cbranch_scc1 L_fin")
    e("s_mov_b32 exec_hi, 0xffff")
    P = X(0)
    for q in range(4):
        e(f"ds_read_b128 {v(P+4*q,4)}, {v(G.V_T6A+(q&1))} offset:{3072*(q&1)+6144*(q>>1)}", "t6")
    for p in range(4): e(f"v_lshlrev_b32 {v(XR+12+p)}, 16, {v(XR+12+p)}")
    for h in range(2): e(f"v_pk_add_f32 {pr(P,h)}, {pr(P,h)}, {pr(P+4,h)}")
    for h in range(2): e(f"v_pk_add_f32 {pr(P+8,h)}, {pr(P+8,h)}, {pr(P+12,h)}")
    for h in range(2): e(f"v_pk_add_f32 {pr(P,h)}, {pr(P,h)}, {pr(P+8,h)}")
    for p in range(4): e(f"v_add_f32 {v(P+p)}, {v(P+p)}, {v(WS)}")
    for p in range(4): e(f"v_fma_f32 {v(P+p)}, {v(P+p)}, {v(WS+1)}, {v(XR+12+p)}")
    for p in range(4): e(f"v_cvt_pk_bf16_f32 {v(P+p)}, {v(P+p)}, {v(P+p)}")
    for p in range(4): e(f"buffer_store_short {v(P+p)}, {v(G.V_T6X)}, {s(G.SRD_OUT,4)}, 0 offen offset:{192*p} sc0 sc1")
    k.p.ins.append(Ins("L_fin:"))
    k.mark("end")
    if k.stamps:
        e("s_memrealtime s[20:21]").kind = "salu"
        e("s_load_dwordx2 s[24:25], s[0:1], 72").kind = "salu"
        e("s_waitcnt vmcnt(0) lgkmcnt(0)")
        e("s_mov_b64 exec, -1")
        e("s_mov_b32 s26, 0x10000000"); e("s_mov_b32 s27, 0x20000")
        e(f"s_lshl_b32 s22, s2, 2"); e(f"s_add_u32 s22, s22, {s(G.S_W)}"); e("s_lshl_b32 s22, s22, 6"); e("v_mov_b32 v2, s22")
        for i in range(k.nst):
            e(f"v_mov_b32 v1, {s(G.S_STAMP+2*i)}"); e(f"buffer_store_dword v1, v2, s[24:27], 0 offen offset:{4*i}")
        e("s_waitcnt vmcnt(0)")
```

```python
import math, struct, sys
from fw import *

NAME = "standalone__modern_conv_block_convnext__vision"
def f2u(x): return struct.unpack("<I", struct.pack("<f", x))[0]
C0 = 2 * math.sqrt(2 / math.pi) / math.log(2)
ALPHA = (C0 * 0.044715) ** (1 / 3)
BETA = C0 / ALPHA
ROWB = 43008

L_XT, L_LN = 0, 0
L_W2B, L_W1B, L_W2A, L_W1A = 49152, 73728, 98304, 122880
L_STAT = 147456
L_B1, L_B2, L_GM, L_ZERO = 155648, 157184, 157760, 158336
L_RING, L_OUTB, L_TCX, L_OUTC, L_T6 = 49152, 98304, 124928, 49152, 65536
LDS_BYTES = 163840

def v(i, n=1): return f"v{i}" if n == 1 else f"v[{i}:{i+n-1}]"
def a(i, n=1): return f"a{i}" if n == 1 else f"a[{i}:{i+n-1}]"
def s(i, n=1): return f"s{i}" if n == 1 else f"s[{i}:{i+n-1}]"

SRD_X, SRD_DW, SRD_W1, SRD_W2, SRD_B1, SRD_BG, SRD_OUT = 20, 24, 28, 32, 36, 40, 44
S_W, S_HH, S_GRP, S_TILE, S_XB, S_LO, S_SPAN, S_PLO, S_PHI = 48, 49, 50, 51, 52, 53, 54, 55, 56
S_T0, S_T1 = 57, 3
S_NBETA, S_ONE = 58, 60
S_THR, S_SOFF = 62, 71
S_M01, S_M23, S_MA, S_MB, S_MC, S_MD = 80, 82, 84, 86, 88, 90
S_W1SO = 92
S_XA, S_XBB = 97, 98
S_4096, S_T2, S_T3 = 99, 100, 101
S_STAMP = 6

V_L16, V_L16B, V_BIA0, V_BIA1, V_GM, V_OW0, V_OW1, V_OR0, V_XRB, V_XRC, V_LNR, V_TMP = 1, 2, 3, 4, 5, 6, 7, 8, 11, 12, 13, 14
V_TMP2 = 15
V_ID = 16
V_DW1, V_DW2 = 24, 25
V_T6A, V_T6X = 26, 28
V_RAW, V_ACC, V_PB, V_AD = 32, 128, 224, 232
V_XR, V_G, V_B, V_BIAS, V_CH, V_X, V_O, V_WS = 40, 64, 72, 96, 112, 128, 176, 224
V_W1AD, V_W2AD = 40, 42

def w1reg(slot, j):
    if slot == 5 and j >= 4: return v(V_WS + 24 + (j - 4) * 4, 4), ("v", V_WS + 24 + (j - 4) * 4)
    r = slot * 24 + j * 4
    return a(r, 4), ("a", r)
def w2reg(slot, ct, st):
    k = (ct * 2 + st) * 4
    if slot == 5: return v(V_WS + k, 4), ("v", V_WS + k)
    r = 136 + slot * 24 + k
    return a(r, 4), ("a", r)
def half(kr, h):
    k, r = kr
    return f"{k}[{r+2*h}:{r+2*h+1}]"

class K:
    def __init__(k, dbg=None, stamps=False):
        k.p = Prog(); k.dbg = dbg; k.stamps = stamps; k.nst = 0
    def e(k, t, tag=None): return k.p.e(t, tag)
    def x(k, l): k.p.ext(l)
    def mark(k, name):
        k.p.ins.append(Ins(f"@{name}:"))
        if k.stamps:
            assert k.nst < 6
            k.e(f"s_memtime {s(S_STAMP + 2 * k.nst, 2)}", "stamp").kind = "salu"
            k.nst += 1

    def xaddr(k, i):
        A = V_AD + 8 * i; T = V_PB
        u, aa, rem, cq, t, base, lc = T, T + 1, T + 2, T + 3, T + 4, T + 5, T + 6
        dst = 29 + i
        o = []
        o.append(f"v_add_u32 {v(u)}, {256*i}, v0")
        o.append(f"v_mul_u32_u24 {v(aa)}, 607, {v(u)}")
        o.append(f"v_lshrrev_b32 {v(aa)}, 16, {v(aa)}")
        o.append(f"v_mul_u32_u24 {v(t)}, 108, {v(aa)}")
        o.append(f"v_sub_u32 {v(rem)}, {v(u)}, {v(t)}")
        o.append(f"v_mul_u32_u24 {v(cq)}, 43, {v(rem)}")
        o.append(f"v_lshrrev_b32 {v(cq)}, 9, {v(cq)}")
        o.append(f"v_mad_u32_u24 {v(t)}, {v(cq)}, 36, {v(rem)}")
        o.append(f"v_mul_u32_u24 {v(base)}, {ROWB}, {v(aa)}")
        o.append(f"v_lshl_add_u32 {v(base)}, {v(t)}, 4, {v(base)}")
        o.append(f"v_add_u32 {v(base)}, {s(S_XB)}, {v(base)}")
        o.append(f"v_lshlrev_b32 {v(lc)}, 2, {v(cq)}")
        o.append(f"v_subrev_u32 {v(lc)}, {s(S_LO)}, {v(lc)}")
        M = (S_MA, S_MB, S_MC, S_MD)
        for j in range(4):
            o.append(f"v_add_u32 {v(t)}, {j}, {v(lc)}")
            o.append(f"v_cmp_gt_u32 {s(M[j],2)}, {s(S_SPAN)}, {v(t)}")
            o.append(f"v_add_u32 {v(A+j)}, {192*j}, {v(base)}")
        o.append(f"v_bfrev_b32 {v(lc)}, 1")
        for j in range(4):
            o.append(f"v_cndmask_b32 {v(A+j)}, {v(lc)}, {v(A+j)}, {s(M[j],2)}")
        if i == 2:
            o.append(f"v_cmp_gt_u32 vcc, 136, v0")
        for j in range(4):
            o.append(f"v_add_u32 {v(A+4+j)}, {7*ROWB}, {v(A+j)}")
        if i == 2:
            for j in range(4):
                o.append(f"v_cndmask_b32 {v(A+4+j)}, {v(lc)}, {v(A+4+j)}, vcc")
        w = []
        q = base
        w.append(f"v_mul_u32_u24 {v(t)}, 12, {v(cq)}")
        w.append(f"v_sub_u32 {v(q)}, {v(rem)}, {v(t)}")
        w.append(f"v_mul_u32_u24 {v(aa)}, 9, {v(aa)}")
        w.append(f"v_add_u32 {v(aa)}, {v(aa)}, {v(cq)}")
        w.append(f"v_and_b32 {v(t)}, 3, {v(q)}")
        w.append(f"v_lshl_add_u32 {v(aa)}, {v(t)}, 1, {v(aa)}")
        w.append(f"v_bfe_u32 {v(t)}, {v(q)}, 2, 1")
        w.append(f"v_add_u32 {v(aa)}, {v(aa)}, {v(t)}")
        w.append(f"v_lshlrev_b32 {v(q)}, 13, {v(q)}")
        w.append(f"v_lshl_add_u32 {v(dst)}, {v(aa)}, 4, {v(q)}")
        return o, w

    def xload(k, i, n):
        j, b = n // 2, n % 2
        return Ins(f"buffer_load_dwordx4 {v(V_RAW+32*i+16*b+4*j,4)}, {v(V_AD+8*i+4*b+j)}, {s(SRD_X,4)}, 0 offen", f"x{i}")

    def srd(k, r, ptr, n):
        return [f"s_mov_b32 {s(r)}, {s(ptr)}", f"s_mov_b32 {s(r+1)}, {s(ptr+1)}", f"s_mov_b32 {s(r+2)}, {n}", f"s_mov_b32 {s(r+3)}, 0x20000"]

    def prologue(k):
        e = k.e
        e("s_cmp_ge_u32 s2, 256"); e("s_cbranch_scc1 L_end")
        e("s_load_dwordx16 s[4:19], s[0:1], 0")
        e(f"""
        s_and_b32 {s(S_T0)}, s2, 1
        s_lshl_b32 {s(S_T0)}, {s(S_T0)}, 2
        s_bfe_u32 {s(S_T1)}, s2, 0x20003
        s_add_u32 {s(S_T0)}, {s(S_T0)}, {s(S_T1)}
        s_bfe_u32 {s(S_T1)}, s2, 0x20001
        s_lshl_b32 {s(S_T1)}, {s(S_T1)}, 3
        s_lshr_b32 {s(S_T2)}, s2, 5
        s_add_u32 {s(S_T1)}, {s(S_T1)}, {s(S_T2)}
        s_mul_i32 {s(S_TILE)}, {s(S_T1)}, {7*ROWB}
        s_mul_i32 {s(S_T2)}, {s(S_T0)}, {28*192}
        s_add_u32 {s(S_TILE)}, {s(S_TILE)}, {s(S_T2)}
        s_sub_u32 {s(S_XB)}, {s(S_TILE)}, {3*ROWB+576}
        s_cmp_eq_u32 {s(S_T0)}, 0
        s_cselect_b32 {s(S_LO)}, 3, 0
        s_cmp_eq_u32 {s(S_T0)}, 7
        s_cselect_b32 {s(S_SPAN)}, 31, 34
        s_sub_u32 {s(S_SPAN)}, {s(S_SPAN)}, {s(S_LO)}
        v_lshrrev_b32 v15, 6, v0
        v_and_b32 v14, 63, v0
        v_readfirstlane_b32 {s(S_W)}, v15
        v_lshlrev_b32 {v(V_L16)}, 4, v14
        """)
        LANE = 14
        D = V_RAW + 64
        i7, cq6, doff, dtab = D + 14, D + 15, D + 16, D + 17
        e(f"""
        v_mul_u32_u24 {v(i7)}, 43, {v(LANE)}
        v_lshrrev_b32 {v(i7)}, 8, {v(i7)}
        v_mul_u32_u24 {v(cq6)}, 6, {v(i7)}
        v_sub_u32 {v(cq6)}, {v(LANE)}, {v(cq6)}
        v_mul_u32_u24 {v(doff)}, 1344, {v(i7)}
        v_lshl_add_u32 {v(doff)}, {v(cq6)}, 3, {v(doff)}
        v_mad_u32_u24 {v(doff)}, v15, 48, {v(doff)}
        """)
        o0, w0 = k.xaddr(0)
        k.x(o0)
        e(f"s_and_b32 {s(S_HH)}, {s(S_W)}, 1"); e(f"s_lshr_b32 {s(S_GRP)}, {s(S_W)}, 1")
        e("s_waitcnt lgkmcnt(0)")
        k.x(k.srd(SRD_DW, 6, 9408)); k.x(k.srd(SRD_X, 4, 9633792))
        for j in range(7):
            e(f"buffer_load_dwordx2 {v(D+2*j,2)}, {v(doff)}, {s(SRD_DW,4)}, 0 offen offset:{192*j}", "dw")
        sb1, sbg, ob1, obg = D + 18, D + 19, D + 20, D + 21
        k.x(k.srd(SRD_B1, 10, 768))
        e(f"s_cmp_eq_u32 {s(S_GRP)}, 0")
        e(f"s_cselect_b32 {s(SRD_BG)}, s14, s16"); e(f"s_cselect_b32 {s(SRD_BG+1)}, s15, s17")
        e(f"s_mov_b32 {s(SRD_BG+2)}, 192"); e(f"s_mov_b32 {s(SRD_BG+3)}, 0x20000")
        e(f"""
        v_mad_u32_u24 {v(ob1)}, v15, 48, {v(LANE)}
        v_lshlrev_b32 {v(ob1)}, 2, {v(ob1)}
        v_subrev_u32 {v(obg)}, 24, {v(LANE)}
        v_min_u32 {v(obg)}, {v(obg)}, {v(LANE)}
        s_mul_i32 {s(S_T0)}, {s(S_HH)}, 96
        v_lshl_add_u32 {v(obg)}, {v(obg)}, 2, {s(S_T0)}
        """)
        e(f"buffer_load_dword {v(sb1)}, {v(ob1)}, {s(SRD_B1,4)}, 0 offen", "sm")
        e(f"buffer_load_dword {v(sbg)}, {v(obg)}, {s(SRD_BG,4)}, 0 offen", "sm")
        o1, w1 = k.xaddr(1); o2, w2 = k.xaddr(2)
        fill = w0 + o1
        per = -(-len(fill) // 7)
        for n in range(8):
            k.x([k.xload(0, n)]); k.x(fill[n * per:(n + 1) * per])
        fill = w1 + o2 + w2
        per = -(-len(fill) // 4)
        for n in range(4):
            k.x([k.xload(1, n)]); k.x(fill[n * per:(n + 1) * per])
        k.mark("x12")
        k.x(k.srd(SRD_W1, 8, 73728)); k.x(k.srd(SRD_W2, 12, 73728)); k.x(k.srd(SRD_OUT, 18, 9633792))
        e(f"s_mov_b32 {s(S_PLO)}, 0x05040100"); e(f"s_mov_b32 {s(S_PHI)}, 0x07060302")
        for r in range(96): e(f"v_mov_b32 {v(V_ACC+r)}, 0")
        k.setup_consts(LANE)
        e(f"""
        v_lshlrev_b32 {v(dtab)}, 10, {v(cq6)}
        v_lshl_add_u32 {v(dtab)}, {v(i7)}, 5, {v(dtab)}
        s_mul_i32 {s(S_T0)}, {s(S_W)}, 6144
        v_add_u32 {v(dtab)}, {s(S_T0)}, {v(dtab)}
        s_mov_b32 exec_hi, 0xffff
        """)
        for c in range(4):
            R = lambda j: v(D + 2 * j + (c >> 1)); sel = s(S_PHI if c & 1 else S_PLO)
            B0 = V_PB
            for d, j in enumerate((0, 2, 4)): e(f"v_perm_b32 {v(B0+d)}, {R(j+1)}, {R(j)}, {sel}")
            e(f"v_lshrrev_b32 {v(B0+3)}, 16, {R(6)}" if c & 1 else f"v_and_b32 {v(B0+3)}, 0xffff, {R(6)}")
            e(f"v_and_b32 {v(B0+4)}, 0xffff0000, {R(0)}" if c & 1 else f"v_lshlrev_b32 {v(B0+4)}, 16, {R(0)}")
            for d, j in enumerate((1, 3, 5)): e(f"v_perm_b32 {v(B0+5+d)}, {R(j+1)}, {R(j)}, {sel}")
            e(f"ds_write_b128 {v(dtab)}, {v(B0,4)} offset:{256*c}")
            e(f"ds_write_b128 {v(dtab)}, {v(B0+4,4)} offset:{256*c+16}")
        t0 = V_PB
        e(f"""
        v_lshlrev_b32 {v(t0)}, 16, {v(sb1)}
        v_and_b32 {v(t0+1)}, 0xffff0000, {v(sb1)}
        v_mul_f32 {v(t0)}, {f2u(ALPHA):#x}, {v(t0)}
        v_mul_f32 {v(t0+1)}, {f2u(ALPHA):#x}, {v(t0+1)}
        v_lshlrev_b32 {v(ob1)}, 1, {v(ob1)}
        v_add_u32 {v(ob1)}, {L_B1}, {v(ob1)}
        ds_write_b64 {v(ob1)}, {v(t0,2)}
        s_cmp_eq_u32 {s(S_GRP)}, 0
        s_cselect_b32 {s(S_T0)}, {f2u(ALPHA):#x}, {s(S_T3)}
        s_mul_i32 {s(S_T1)}, {s(S_W)}, 288
        s_add_u32 {s(S_T1)}, {s(S_T1)}, {L_B2}
        v_lshlrev_b32 {v(t0+2)}, 16, {v(sbg)}
        v_and_b32 {v(t0+3)}, 0xffff0000, {v(sbg)}
        v_mul_f32 {v(t0+2)}, {s(S_T0)}, {v(t0+2)}
        v_mul_f32 {v(t0+3)}, {s(S_T0)}, {v(t0+3)}
        v_lshl_add_u32 {v(obg)}, {v(LANE)}, 3, {s(S_T1)}
        s_mov_b32 exec_hi, 0xf
        ds_write_b64 {v(obg)}, {v(t0+2,2)}
        s_mov_b32 exec_hi, -1
        v_mov_b32 {v(t0+4)}, 0
        v_and_b32 {v(t0+5)}, 60, v0
        v_add_u32 {v(t0+5)}, {L_ZERO}, {v(t0+5)}
        ds_write_b32 {v(t0+5)}, {v(t0+4)}
        """)
        for c in range(24):
            for t in range(2):
                e(f"ds_read_b128 {a(8*c+4*t,4)}, {v(k.cvA+t)} offset:{256*c}")
        k.x([Wait(all_lg=True)]); e("s_barrier")
        k.mark("dwdone")
        for n in range(4, 8): k.x([k.xload(1, n)])
        for n in range(8): k.x([k.xload(2, n)])
        k.mark("x24")

    def setup_consts(k, LANE):
        e = k.e
        T = V_RAW + 64 + 22
        t0, t1, t2, t3, t4, t5, t6 = T, T + 1, T + 2, T + 3, T + 4, T + 5, T + 6
        e(f"s_mov_b32 {s(S_NBETA)}, {f2u(-BETA):#x}"); e(f"s_mov_b32 {s(S_NBETA+1)}, {f2u(-BETA):#x}")
        e(f"s_mov_b32 {s(S_ONE)}, 1.0"); e(f"s_mov_b32 {s(S_ONE+1)}, 1.0")
        e(f"s_mov_b32 {s(S_T3)}, {f2u(1/ALPHA):#x}"); e(f"s_movk_i32 {s(S_4096)}, 4096")
        for i, val in enumerate((5120, 10240, 15360, 24576, 29696)): e(f"s_mov_b32 {s(S_W1SO+i)}, {val}")
        e(f"s_mul_i32 {s(S_XA)}, {s(S_HH)}, 48"); e(f"s_sub_u32 {s(S_XBB)}, 48, {s(S_XA)}")
        e(f"s_mov_b32 {s(S_M01)}, 0x3fff3fff"); e(f"s_mov_b32 {s(S_M01+1)}, 0x3fff3fff")
        e(f"s_mov_b32 {s(S_M23)}, 0x3fff3fff"); e(f"s_mov_b32 {s(S_M23+1)}, 0x3fff")
        e(f"v_add_u32 {v(V_L16B)}, {ROWB-5376}, {v(V_L16)}")
        k.park = {}
        def park(name, r):
            k.park[name] = 192 + len(k.park); e(f"v_accvgpr_write_b32 {a(k.park[name])}, {v(r)}")
        k.cvA = V_XRB; k.idx = V_LNR
        dy, gA = t0, t1
        e(f"v_bfe_u32 {v(dy)}, {v(LANE)}, 1, 3"); e(f"v_lshrrev_b32 {v(gA)}, 4, {v(LANE)}")
        e(f"s_mul_i32 {s(S_T0)}, {s(S_W)}, 6144")
        e(f"v_and_b32 {v(t2)}, 1, {v(LANE)}"); e(f"v_lshl_add_u32 {v(t2)}, {v(t2)}, 4, {s(S_T0)}")
        e(f"v_cmp_eq_u32 {s(S_MA,2)}, 7, {v(dy)}")
        e(f"v_mov_b32 {v(t5)}, 0x4444"); e(f"v_mov_b32 {v(t6)}, 0xeeee")
        for t in range(2):
            e(f"v_add_u32 {v(t3)}, {4*t}, {v(gA)}")
            e(f"v_cmp_eq_u32 {s(S_MB,2)}, 7, {v(t3)}")
            e(f"v_cmp_lt_u32 {s(S_MC,2)}, {v(t3)}, {v(dy)}")
            e(f"v_sub_u32 {v(t3)}, {v(t3)}, {v(dy)}")
            e(f"v_add_u32 {v(t4)}, 7, {v(t3)}")
            e(f"s_or_b64 {s(S_MB,2)}, {s(S_MB,2)}, {s(S_MA,2)}")
            e(f"v_cndmask_b32 {v(t3)}, {v(t3)}, {v(t4)}, {s(S_MC,2)}")
            e(f"s_andn2_b64 {s(S_MC,2)}, {s(S_MC,2)}, {s(S_MA,2)}")
            e(f"v_cndmask_b32 {v(t3)}, {v(t3)}, 7, {s(S_MB,2)}")
            e(f"v_lshl_add_u32 {v(k.cvA+t)}, {v(t3)}, 5, {v(t2)}")
            e(f"v_cndmask_b32 {v(t4)}, {v(t5)}, {v(t6)}, {s(S_MC,2)}")
            if t == 0: e(f"v_mov_b32 {v(k.idx)}, {v(t4)}")
            else: e(f"v_lshl_or_b32 {v(k.idx)}, {v(t4)}, 16, {v(k.idx)}")
        park("idx", k.idx)
        n16, g = t0, t1
        e(f"v_and_b32 {v(n16)}, 15, {v(LANE)}")
        e(f"v_bfe_u32 {v(t2)}, {v(LANE)}, 4, 1"); e(f"v_lshl_add_u32 {v(t2)}, {v(t2)}, 1, {v(n16)}")
        e(f"v_lshlrev_b32 {v(t2)}, 3, {v(t2)}")
        e(f"v_lshrrev_b32 {v(t3)}, 5, {v(LANE)}"); e(f"v_mul_u32_u24 {v(t3)}, 144, {v(t3)}")
        for o in range(3):
            e(f"s_mul_i32 {s(S_T0)}, {s(S_W)}, 3"); e(f"s_add_u32 {s(S_T0)}, {s(S_T0)}, {o}")
            e(f"s_and_b32 {s(S_T1)}, {s(S_T0)}, 3"); e(f"s_lshl_b32 {s(S_T1)}, {s(S_T1)}, 5")
            e(f"s_bfe_u32 {s(S_T2)}, {s(S_T0)}, 0x10002"); e(f"s_lshl_b32 {s(S_T2)}, {s(S_T2)}, 4")
            e(f"s_lshl_b32 {s(S_T0)}, {s(S_T0)}, 13"); e(f"s_add_u32 {s(S_T0)}, {s(S_T0)}, {s(S_T1)}"); e(f"s_add_u32 {s(S_T0)}, {s(S_T0)}, {s(S_T2)}")
            e(f"v_add_u32 {v(t4)}, {s(S_T0)}, {v(t2)}"); park(f"cvc{o}", t4)
            e(f"v_add_u32 {v(t4)}, {v(t4)}, {v(t3)}"); park(f"cvb{o}", t4)
        e(f"v_mul_u32_u24 {v(t2)}, 56, {v(g)}"); e(f"v_lshl_add_u32 {v(t2)}, {v(n16)}, 1, {v(t2)}")
        e(f"s_mul_i32 {s(S_T0)}, {s(S_W)}, 1536")
        for r in range(4):
            e(f"v_add_u32 {v(t3)}, {28*(r>>1)+(r&1)}, {v(t2)}")
            e(f"v_lshrrev_b32 {v(t4)}, 5, {v(t3)}"); e(f"v_mul_u32_u24 {v(t4)}, 6144, {v(t4)}")
            e(f"v_and_b32 {v(t3)}, 31, {v(t3)}"); e(f"v_lshl_add_u32 {v(t4)}, {v(t3)}, 4, {v(t4)}")
            e(f"v_add_u32 {v(t4)}, {s(S_T0)}, {v(t4)}"); park(f"lnw{r}", t4)
        e(f"v_lshrrev_b32 {v(t2)}, 3, {v(LANE)}"); e(f"v_mul_u32_u24 {v(t2)}, 768, {v(t2)}")
        e(f"v_bfe_u32 {v(t3)}, {v(LANE)}, 4, 1"); e(f"v_lshlrev_b32 {v(t3)}, 2, {v(t3)}")
        e(f"v_and_b32 {v(t4)}, 7, {v(LANE)}"); e(f"v_xor_b32 {v(t3)}, {v(t3)}, {v(t4)}")
        e(f"v_lshl_add_u32 {v(t2)}, {v(t3)}, 4, {v(t2)}")
        e(f"s_mul_i32 {s(S_T0)}, {s(S_GRP)}, 384"); e(f"s_mul_i32 {s(S_T1)}, {s(S_HH)}, {48*768}"); e(f"s_add_u32 {s(S_T0)}, {s(S_T0)}, {s(S_T1)}")
        e(f"v_add_u32 {v(V_DW1)}, {s(S_T0)}, {v(t2)}")
        e(f"s_mul_i32 {s(S_T0)}, {s(S_GRP)}, 36864"); e(f"s_mul_i32 {s(S_T1)}, {s(S_HH)}, 6144"); e(f"s_add_u32 {s(S_T0)}, {s(S_T0)}, {s(S_T1)}")
        e(f"v_add_u32 {v(V_DW2)}, {s(S_T0)}, {v(V_L16)}")
        hi, mh, r, cp = t0, t1, t2, t3
        e(f"v_lshrrev_b32 {v(hi)}, 5, {v(LANE)}"); e(f"v_bfe_u32 {v(mh)}, {v(LANE)}, 4, 1")
        e(f"v_bfe_u32 {v(r)}, {v(LANE)}, 2, 2"); e(f"v_and_b32 {v(cp)}, 3, {v(LANE)}")
        e(f"s_mul_i32 {s(S_T0)}, {s(S_HH)}, 12288"); e(f"s_add_u32 {s(S_T1)}, {s(S_T0)}, {L_W1B}")
        e(f"v_lshl_add_u32 {v(t4)}, {v(hi)}, 3, {v(r)}"); e(f"v_lshlrev_b32 {v(t4)}, 7, {v(t4)}")
        e(f"v_lshl_add_u32 {v(t4)}, {v(mh)}, 5, {v(t4)}"); e(f"v_lshl_add_u32 {v(t4)}, {v(cp)}, 3, {v(t4)}")
        e(f"v_lshrrev_b32 {v(t5)}, 1, {v(r)}"); e(f"v_xor_b32 {v(t5)}, {s(S_GRP)}, {v(t5)}")
        e(f"v_lshl_add_u32 {v(t4)}, {v(t5)}, 6, {v(t4)}"); e(f"v_add_u32 {v(t4)}, {s(S_T1)}, {v(t4)}")
        park("w1a0", t4)
        e(f"v_xor_b32 {v(t4)}, 64, {v(t4)}"); park("w1a1", t4)
        e(f"s_add_u32 {s(S_T1)}, {s(S_T0)}, {L_W2B}")
        e(f"v_lshl_add_u32 {v(t4)}, {v(hi)}, 2, {v(r)}"); e(f"v_mul_u32_u24 {v(t4)}, 192, {v(t4)}")
        e(f"v_and_b32 {v(t5)}, 1, {v(cp)}"); e(f"v_mul_u32_u24 {v(t5)}, 96, {v(t5)}")
        e(f"v_add3_u32 {v(t4)}, {v(t4)}, {v(t5)}, {s(S_T1)}")
        e(f"v_lshrrev_b32 {v(t5)}, 1, {v(cp)}"); e(f"v_lshl_add_u32 {v(t5)}, {v(mh)}, 1, {v(t5)}")
        e(f"s_mul_i32 {s(S_T0)}, {s(S_HH)}, 6"); e(f"s_mul_i32 {s(S_T1)}, {s(S_GRP)}, 6144"); e(f"s_sub_u32 {s(S_T2)}, 6144, {s(S_T1)}")
        e(f"v_add_u32 {v(t5)}, {s(S_T0)}, {v(t5)}")
        for ct in range(3):
            e(f"v_add_u32 {v(t6)}, {4*ct}, {v(t5)}"); e(f"v_subrev_u32 {v(r)}, 12, {v(t6)}"); e(f"v_min_u32 {v(t6)}, {v(t6)}, {v(r)}")
            e(f"v_lshl_add_u32 {v(t6)}, {v(t6)}, 3, {v(t4)}")
            e(f"v_add_u32 {v(r)}, {s(S_T1)}, {v(t6)}"); park(f"w2a{ct}0", r)
            e(f"v_add_u32 {v(r)}, {s(S_T2)}, {v(t6)}"); park(f"w2a{ct}1", r)
        e(f"s_mul_i32 {s(S_T0)}, {s(S_HH)}, 768"); e(f"s_lshl_b32 {s(S_T1)}, {s(S_GRP)}, 7"); e(f"s_add_u32 {s(S_T0)}, {s(S_T0)}, {s(S_T1)}")
        e(f"s_add_u32 {s(S_T0)}, {s(S_T0)}, {L_B1}")
        e(f"v_lshl_add_u32 {v(V_BIA0)}, {v(hi)}, 4, {s(S_T0)}"); e(f"v_xor_b32 {v(V_BIA1)}, 0x80, {v(V_BIA0)}")
        e(f"s_mul_i32 {s(S_T0)}, {s(S_HH)}, 96"); e(f"s_add_u32 {s(S_T0)}, {s(S_T0)}, {L_B2}")
        e(f"v_mul_u32_u24 {v(t4)}, 288, {v(hi)}"); e(f"v_add_u32 {v(V_GM)}, {s(S_T0)}, {v(t4)}")
        n32 = t1
        e(f"v_and_b32 {v(n32)}, 31, {v(LANE)}")
        e(f"v_mul_u32_u24 {v(t4)}, 208, {v(n32)}"); e(f"v_mul_u32_u24 {v(t5)}, 96, {v(hi)}"); e(f"v_add_u32 {v(t4)}, {v(t4)}, {v(t5)}")
        e(f"s_mul_i32 {s(S_T0)}, {s(S_W)}, 6656"); e(f"s_add_u32 {s(S_T0)}, {s(S_T0)}, {L_OUTB}")
        e(f"v_add3_u32 {v(V_OW0)}, {v(t4)}, {s(S_T0)}, 0"); e(f"v_add_u32 {v(V_OW1)}, {s(S_XBB)}, {v(V_OW0)}"); e(f"v_add_u32 {v(V_OW0)}, {s(S_XA)}, {v(V_OW0)}")
        for kk in range(3):
            e(f"v_add_u32 {v(t4)}, {64*kk}, {v(LANE)}"); e(f"v_mul_u32_u24 {v(t6)}, 171, {v(t4)}"); e(f"v_lshrrev_b32 {v(t6)}, 11, {v(t6)}")
            e(f"v_add_u32 {v(t4)}, {v(t4)}, {v(t6)}"); e(f"v_lshl_add_u32 {v(V_OR0+kk)}, {v(t4)}, 4, {s(S_T0)}")
        k.s_tb, k.s_tc = S_MA, S_MA + 1
        e(f"s_mul_i32 {s(S_T0)}, {s(S_GRP)}, 3")
        e(f"s_add_u32 {s(k.s_tc)}, {s(S_T0)}, 2"); e(f"s_add_u32 {s(k.s_tb)}, {s(S_T0)}, 1"); e(f"s_sub_u32 {s(k.s_tb)}, {s(k.s_tb)}, {s(S_HH)}")
        e(f"s_add_u32 {s(S_T0)}, {s(S_T0)}, {s(S_HH)}"); e(f"s_mul_i32 {s(S_T0)}, {s(S_T0)}, 6144")
        e(f"v_add_u32 {v(t4)}, {s(S_T0)}, {v(V_L16)}"); park("lnr", t4)
        for nm, st in (("xrb", k.s_tb), ("xrc", k.s_tc)):
            e(f"s_lshl_b32 {s(S_T0)}, {s(st)}, 5"); e(f"v_add_u32 {v(t4)}, {s(S_T0)}, {v(n32)}")
            e(f"v_mul_u32_u24 {v(t6)}, 2341, {v(t4)}"); e(f"v_lshrrev_b32 {v(t6)}, 16, {v(t6)}")
            e(f"v_mul_u32_u24 {v(t6)}, {ROWB-5376}, {v(t6)}"); e(f"v_mul_u32_u24 {v(t4)}, 192, {v(t4)}")
            e(f"v_add3_u32 {v(t4)}, {v(t4)}, {v(t6)}, {v(t5)}"); e(f"v_add_u32 {v(t4)}, {s(S_TILE)}, {v(t4)}"); park(nm, t4)
        for i in range(9):
            if i < 6: e(f"s_mul_i32 {s(S_T0)}, {s(k.s_tb)}, 384"); e(f"s_add_u32 {s(S_T0)}, {s(S_T0)}, {64*i}")
            else:
                e(f"s_mul_i32 {s(S_T0)}, {s(k.s_tc)}, 384"); e(f"s_mul_i32 {s(S_T1)}, {s(S_HH)}, 192")
                e(f"s_add_u32 {s(S_T0)}, {s(S_T0)}, {s(S_T1)}"); e(f"s_add_u32 {s(S_T0)}, {s(S_T0)}, {64*(i-6)}")
            e(f"s_mul_i32 {s(S_T1)}, {s(S_T0)}, 3121"); e(f"s_lshr_b32 {s(S_T1)}, {s(S_T1)}, 20")
            e(f"s_mul_i32 {s(S_T2)}, {s(S_T1)}, 336"); e(f"s_add_u32 {s(S_T2)}, {s(S_T2)}, 336"); e(f"s_sub_u32 {s(S_T2)}, {s(S_T2)}, {s(S_T0)}")
            e(f"s_lshl_b32 {s(S_THR+i)}, {s(S_T2)}, 4")
            e(f"s_mul_i32 {s(S_T1)}, {s(S_T1)}, {ROWB-5376}"); e(f"s_lshl_b32 {s(S_T0)}, {s(S_T0)}, 4")
            e(f"s_add_u32 {s(S_T0)}, {s(S_T0)}, {s(S_T1)}"); e(f"s_add_u32 {s(S_SOFF+i)}, {s(S_T0)}, {s(S_TILE)}")
        e(f"s_sub_u32 {s(S_MB)}, 1, {s(S_HH)}"); e(f"s_sub_u32 {s(S_MB)}, {s(S_MB)}, {s(S_HH)}"); e(f"s_mul_i32 {s(S_MB)}, {s(S_MB)}, 6144")
        e(f"s_sub_u32 {s(S_MB+1)}, {s(k.s_tc)}, {s(k.s_tb)}"); e(f"s_mul_i32 {s(S_MB+1)}, {s(S_MB+1)}, 6144")
        e(f"s_sub_u32 {s(S_MC)}, 6, {s(k.s_tc)}"); e(f"s_mul_i32 {s(S_MC)}, {s(S_MC)}, 6144")
        k.s_dln = (S_MB, S_MB + 1, S_MC)
        e(f"v_bfe_u32 {v(t2)}, {v(LANE)}, 2, 1"); e(f"v_cmp_eq_u32 vcc, {v(t2)}, {v(hi)}")
        e(f"v_and_b32 {v(t2)}, 1, {v(LANE)}"); e(f"v_lshlrev_b32 {v(t2)}, 4, {v(t2)}")
        e(f"v_mov_b32 {v(t3)}, 0x3f80"); e(f"v_lshlrev_b32 {v(t3)}, {v(t2)}, {v(t3)}"); e(f"v_cndmask_b32 {v(t3)}, 0, {v(t3)}, vcc")
        e(f"v_bfe_u32 {v(t2)}, {v(LANE)}, 3, 2"); e(f"v_bfe_u32 {v(t4)}, {v(LANE)}, 1, 1"); e(f"v_lshl_add_u32 {v(t2)}, {v(t2)}, 1, {v(t4)}")
        for d in range(8):
            e(f"v_cmp_eq_u32 vcc, {d}, {v(t2)}"); e(f"v_cndmask_b32 {v(V_ID+d)}, 0, {v(t3)}, vcc")
        e(f"v_lshrrev_b32 {v(t2)}, 2, {v(LANE)}"); e(f"v_and_b32 {v(t3)}, 3, {v(LANE)}")
        e(f"s_lshl_b32 {s(S_T0)}, {s(S_HH)}, 6"); e(f"s_add_u32 {s(S_T0)}, {s(S_T0)}, {L_T6}")
        e(f"v_lshl_add_u32 {v(t3)}, {v(t3)}, 4, {s(S_T0)}")
        for h in range(2):
            if h:
                e(f"v_add_u32 {v(t2)}, 6, {v(t2)}"); e(f"v_subrev_u32 {v(t4)}, 12, {v(t2)}"); e(f"v_min_u32 {v(t2)}, {v(t2)}, {v(t4)}")
            e(f"v_lshrrev_b32 {v(t4)}, 2, {v(t2)}"); e(f"v_lshl_add_u32 {v(t4)}, {v(t4)}, 10, {v(t3)}")
            e(f"v_and_b32 {v(t6)}, 3, {v(t2)}"); e(f"v_lshl_add_u32 {v(V_T6A+h)}, {v(t6)}, 7, {v(t4)}")
        e(f"s_mul_i32 {s(S_T0)}, {s(S_HH)}, 96"); e(f"s_add_u32 {s(S_T0)}, {s(S_T0)}, {s(S_TILE)}"); e(f"s_add_u32 {s(S_T0)}, {s(S_T0)}, {6*ROWB+24*192}")
        e(f"v_lshl_add_u32 {v(V_T6X)}, {v(LANE)}, 1, {s(S_T0)}")
        e(f"s_mul_i32 {s(S_T0)}, {s(S_HH)}, 288"); e(f"s_add_u32 {s(S_T0)}, {s(S_T0)}, {L_B2}")
        e(f"v_lshl_add_u32 {v(t4)}, {v(LANE)}, 2, {s(S_T0)}"); park("t6t", t4)

    def unpark(k, name, r): return f"v_accvgpr_read_b32 {v(r)}, {a(k.park[name])}"

    def dma(k, which, kp):
        base = {("w1", 0): L_W1A, ("w1", 1): L_W1B, ("w1", 2): L_W1A, ("w2", 0): L_W2A, ("w2", 1): L_W2B, ("w2", 2): L_W2A}[which, kp]
        va, srd = (V_DW1, SRD_W1) if which == "w1" else (V_DW2, SRD_W2)
        o = []
        for i in range(6):
            g = []
            if i % 4 == 0:
                g.append(f"s_mul_i32 {s(S_T0)}, {s(S_W)}, 6144" if i == 0 else "s_nop 0")
                g.append(f"s_add_u32 m0, {s(S_T0)}, {base + 4096*(i//4)}")
                g.append("s_nop 0")
            so = ("0" if i == 0 else s(S_W1SO + i - 1)) if which == "w1" else ("0" if i < 4 else s(S_4096))
            g.append(Ins(f"buffer_load_dwordx4 {v(va)}, {s(srd,4)}, {so} offen offset:{1024*(i%4)} lds", f"{which}{kp}"))
            o.append(g)
        adv = f"v_add_u32 {v(va)}, {128 if which == 'w1' else 12288}, {v(va)}"
        return o, adv

    def transpose(k, i):
        e = k.e; R = V_RAW + 32 * i
        if i == 2:
            e(f"v_cmp_gt_u32 vcc, 244, v0"); e("s_nop 1"); e("s_mov_b64 exec, vcc")
        for c in range(8):
            B0 = V_PB + 4 * (c & 1); sel = s(S_PHI if c & 1 else S_PLO); h = c >> 1
            px = lambda b, j: v(R + 16 * b + 4 * j + h)
            e(f"v_perm_b32 {v(B0)}, {px(0,1)}, {px(0,0)}, {sel}")
            e(f"v_perm_b32 {v(B0+1)}, {px(1,1)}, {px(1,0)}, {sel}")
            e(f"v_perm_b32 {v(B0+2)}, {px(0,3)}, {px(0,2)}, {sel}")
            e(f"v_perm_b32 {v(B0+3)}, {px(1,3)}, {px(1,2)}, {sel}")
            e(f"ds_write_b128 {v(29+i)}, {v(B0,4)} offset:{1008*c}")
        if i == 2: e("s_mov_b64 exec, -1")

    def conv(k, t, AD, IDX):
        e = k.e; NB = 3
        def rd(c):
            B = V_AD + 8 * (c % NB); o = []
            for r in range(2):
                clamp = t == 1 and r == 1
                ad = AD + 2 * (c >> 3) + (0 if clamp else 1)
                off = (c & 7) * 1008 + (4 * t + 2 * r) * 144
                for h in range(2):
                    o.append(Ins(f"ds_read_b64 {v(B+4*r+2*h,2)}, {v(ad)} offset:{off+8*h}", f"cv{c}"))
            return o
        for c in range(NB - 1): k.x(rd(c))
        for c in range(24):
            if c + NB - 1 < 24: k.x(rd(c + NB - 1))
            k.x([Wait(lg=f"cv{c}")])
            e(f"v_smfmac_f32_16x16x64_bf16 {v(V_ACC+4*c,4)}, {a(8*c+4*t,4)}, {v(V_AD+8*(c%NB),8)}, {v(IDX)} abid:{t}")

    def wtr(k, which, slot):
        kp, sg = slot >> 1, slot & 1
        far = 0 if kp == 1 else 49152
        o = []
        if which == "w1":
            for j in range(6):
                for h in range(2):
                    o.append(Ins(f"ds_read_b64_tr_b16 {half(w1reg(slot,j)[1],h)}, {v(V_W1AD+sg)} offset:{far+2048*j+512*h}", f"W1_{slot}"))
        else:
            for ct in range(3):
                for st in range(2):
                    for h in range(2):
                        o.append(Ins(f"ds_read_b64_tr_b16 {half(w2reg(slot,ct,st)[1],h)}, {v(V_W2AD+2*ct+sg)} offset:{far+3072*st+1536*h}", f"W2_{slot}"))
        return o

    def phaseB(k):
        e = k.e
        d1, adv1 = k.dma("w1", 0); d2, adv2 = k.dma("w2", 0)
        k.transpose(0)
        k.transpose(1)
        AD, IDX = V_RAW, V_RAW + 6
        for o in range(3):
            e(k.unpark(f"cvc{o}", AD + 2 * o)); e(k.unpark(f"cvb{o}", AD + 2 * o + 1))
        e(k.unpark("idx", IDX))
        k.x(d1); e(adv1)
        k.x([Wait(all_lg=True)]); e("s_barrier")
        k.mark("t01")
        k.conv(0, AD, IDX)
        k.transpose(2)
        k.x(d2); e(adv2)
        k.x([Wait(all_lg=True)]); e("s_barrier")
        k.mark("t2")
        k.conv(1, AD, IDX)
        k.mark("conv")
        if k.dbg == "conv": return k.dump_regs([V_ACC + r for r in range(96)])
        S1, S2 = V_RAW + 16, V_RAW + 20
        LW = V_RAW + 24
        ST = V_RAW + 28
        e(f"s_lshl_b32 {s(S_T0)}, {s(S_W)}, 11"); e(f"s_add_u32 {s(S_T0)}, {s(S_T0)}, {L_STAT}")
        e(f"v_add_u32 {v(ST)}, {s(S_T0)}, {v(V_L16)}"); e(f"v_add_u32 {v(ST+1)}, {L_STAT}, {v(V_L16)}")
        for r in range(4): e(k.unpark(f"lnw{r}", LW + r))
        for i, nm in enumerate(("w1a0", "w1a1", "w2a00", "w2a01", "w2a10", "w2a11", "w2a20", "w2a21")):
            e(k.unpark(nm, V_W1AD + i))
        for nm, r in (("xrb", V_XRB), ("xrc", V_XRC), ("lnr", V_LNR), ("t6t", V_T6X + 1)): e(k.unpark(nm, r))
        for c in range(24):
            for h in range(2):
                D = v(V_ACC + 4 * c + 2 * h, 2)
                if c == 0:
                    e(f"v_pk_mul_f32 {v(S2+2*h,2)}, {D}, {D}")
                elif c == 1:
                    e(f"v_pk_add_f32 {v(S1+2*h,2)}, {v(V_ACC+2*h,2)}, {D}")
                    e(f"v_pk_fma_f32 {v(S2+2*h,2)}, {D}, {D}, {v(S2+2*h,2)}")
                else:
                    e(f"v_pk_add_f32 {v(S1+2*h,2)}, {v(S1+2*h,2)}, {D}")
                    e(f"v_pk_fma_f32 {v(S2+2*h,2)}, {D}, {D}, {v(S2+2*h,2)}")
        e(f"ds_write_b128 {v(ST)}, {v(S1,4)}"); e(f"ds_write_b128 {v(ST)}, {v(S2,4)} offset:1024")
        k.x([Wait(all_lg=True, vm=("w10", "w20"))]); e("s_barrier")
        k.mark("stat")
        P = V_RAW + 32
        for w in range(4):
            for h in range(2): e(f"ds_read_b128 {v(P+8*w+4*h,4)}, {v(ST+1)} offset:{2048*w+1024*h}", "st")
        d1, adv1 = k.dma("w1", 1); d2, adv2 = k.dma("w2", 1)
        k.x(d1); e(adv1); k.x(d2); e(adv2)
        for h in range(4):
            e(f"v_pk_add_f32 {v(P+2*h,2)}, {v(P+2*h,2)}, {v(P+8+2*h,2)}")
        for h in range(4):
            e(f"v_pk_add_f32 {v(P+16+2*h,2)}, {v(P+16+2*h,2)}, {v(P+24+2*h,2)}")
        for h in range(4):
            e(f"v_pk_add_f32 {v(P+2*h,2)}, {v(P+2*h,2)}, {v(P+16+2*h,2)}")
        MEAN, VAR, RS, NB = P, P + 4, P + 8, P + 12
        e(f"s_mov_b32 {s(S_T0)}, {f2u(1/96):#x}"); e(f"v_mov_b32 {v(P+16)}, {f2u(1e-5):#x}")
        for r in range(4): e(f"v_mul_f32 {v(MEAN+r)}, {s(S_T0)}, {v(MEAN+r)}")
        for r in range(4): e(f"v_mul_f32 {v(VAR+r)}, {s(S_T0)}, {v(VAR+r)}")
        for r in range(4): e(f"v_fma_f32 {v(VAR+r)}, -{v(MEAN+r)}, {v(MEAN+r)}, {v(VAR+r)}")
        for r in range(4): e(f"v_max_f32 {v(VAR+r)}, 0, {v(VAR+r)}")
        for r in range(4): e(f"v_add_f32 {v(VAR+r)}, {v(P+16)}, {v(VAR+r)}")
        for r in range(4): e(f"v_rsq_f32 {v(RS+r)}, {v(VAR+r)}")
        for r in range(4): e(f"v_mul_f32 {v(RS+r)}, {f2u(ALPHA):#x}, {v(RS+r)}")
        for r in range(4): e(f"v_mul_f32 {v(NB+r)}, -{v(MEAN+r)}, {v(RS+r)}")
        OB = V_PB
        for kk in range(3):
            e(f"s_mov_b64 exec, {s(S_M01,2)}")
            for c in range(8 * kk, 8 * kk + 8):
                for h in range(2):
                    D = v(V_ACC + 4 * c + 2 * h, 2)
                    e(f"v_pk_fma_f32 {D}, {D}, {v(RS+2*h,2)}, {v(NB+2*h,2)}")
            for r in range(4):
                B0 = OB + 4 * r
                for d in range(4):
                    c = 8 * kk + 2 * d
                    e(f"v_cvt_pk_bf16_f32 {v(B0+d)}, {v(V_ACC+4*c+r)}, {v(V_ACC+4*c+4+r)}")
                if r == 2: e(f"s_mov_b64 exec, {s(S_M23,2)}")
                e(f"ds_write_b128 {v(LW+r)}, {v(B0,4)} offset:{512*kk}")
        e("s_mov_b64 exec, -1")
        for sl in range(2):
            k.x(k.wtr("w1", sl)); k.x(k.wtr("w2", sl))
        k.x([Wait(all_lg=True)]); e("s_barrier")
        k.mark("ln")

    def dump_regs(k, regs):
        e = k.e
        e("s_load_dwordx2 s[4:5], s[0:1], 72"); e("s_waitcnt vmcnt(0) lgkmcnt(0)")
        e("s_mov_b32 s6, 0x10000000"); e("s_mov_b32 s7, 0x20000"); e("s_nop 15")
        e(f"s_lshl_b32 s8, s2, 8"); e(f"v_add_u32 v1, s8, v0"); e(f"v_mul_u32_u24 v1, {4*len(regs)}, v1")
        for i, r in enumerate(regs):
            e(f"buffer_store_dword {r if isinstance(r, str) else v(r)}, v1, s[4:7], 0 offen offset:{4*i}")
        e("s_waitcnt vmcnt(0)"); e("s_endpgm")
        k.ended = True

    def dump_lds(k, base, nbytes):
        e = k.e
        e("s_load_dwordx2 s[4:5], s[0:1], 72"); e("s_waitcnt vmcnt(0) lgkmcnt(0)")
        e("s_mov_b32 s6, 0x10000000"); e("s_mov_b32 s7, 0x20000")
        e(f"s_mul_i32 s8, s2, {nbytes}"); e(f"v_lshlrev_b32 v1, 4, v0"); e(f"v_add_u32 v2, s8, v1"); e(f"v_add_u32 v1, {base}, v1")
        for i in range(0, nbytes, 4096):
            e(f"ds_read_b128 v[4:7], v1"); e("s_waitcnt lgkmcnt(0)")
            e(f"buffer_store_dwordx4 v[4:7], v2, s[4:7], 0 offen"); e("s_waitcnt vmcnt(0)")
            e("v_add_u32 v1, 4096, v1"); e("v_add_u32 v2, 4096, v2")
        e("s_endpgm")
        k.ended = True

from phasec import phaseC
K.phaseC = phaseC

def build(dbg=None, stamps=False, verbose=False):
    k = K(dbg, stamps); k.ended = False
    k.prologue(); k.phaseB()
    if not k.ended and dbg == "ln": k.dump_lds(0, 45056)
    if not k.ended: k.phaseC()
    auto = resolve_waits(k.p, verbose)
    pads = check_hazards(k.p)
    tot, marks, idle = estimate(k.p)
    if verbose:
        for i in k.p.ins:
            if getattr(i, "pad", None): print("pad", i.text, i.pad)
    print(f"instructions {len(k.p.ins)}, auto waits {auto}, pad states {pads}, est cycles {tot}, idle {idle}", file=sys.stderr)
    prev = (0, 0)
    for m, t, idl in marks:
        print(f"  {m:14s} t={t:6d} (+{t-prev[0]}, idle +{idl-prev[1]})", file=sys.stderr); prev = (t, idl)
    ref = open(f"cdna_kernels/{NAME}.s.ref").read().split("\n")
    head = [l for l in ref if l.startswith(";") and "@launch" not in l]
    src = "\n".join(head) + f"\n; @launch grid=(256,1,1) block=(256,1,1) lds={LDS_BYTES}\n"
    src += f""".amdgcn_target "amdgcn-amd-amdhsa--gfx950"
.text
.globl {NAME}_kernel
.p2align 8
.type {NAME}_kernel,@function
{NAME}_kernel:
{render(k.p)}
L_end:
    s_endpgm
.section .rodata,"a"
.p2align 6
.amdhsa_kernel {NAME}_kernel
  .amdhsa_next_free_vgpr 512
  .amdhsa_next_free_sgpr 102
  .amdhsa_accum_offset 256
  .amdhsa_group_segment_fixed_size 0
  .amdhsa_kernarg_size 80
  .amdhsa_user_sgpr_count 2
  .amdhsa_user_sgpr_kernarg_segment_ptr 1
  .amdhsa_system_sgpr_workgroup_id_x 1
  .amdhsa_float_denorm_mode_32 3
.end_amdhsa_kernel
"""
    return src

if __name__ == "__main__":
    import argparse
    ap = argparse.ArgumentParser()
    ap.add_argument("-o", default=f"cdna_kernels/{NAME}.s"); ap.add_argument("--dbg"); ap.add_argument("--stamps", action="store_true"); ap.add_argument("-v", action="store_true")
    A = ap.parse_args()
    open(A.o, "w").write(build(A.dbg, A.stamps, A.v))
```
